```python
import torch

def _softmax(x, axis=-1):
    return torch.softmax(x, dim=axis)
def _gelu(x):
    return torch.nn.functional.gelu(x, approximate="tanh")
def _silu(x):
    return torch.nn.functional.silu(x)
def _sigmoid(x):
    return torch.sigmoid(x)
def _layernorm(x, axis=-1, eps=1e-5):
    m = x.mean(dim=axis, keepdim=True)
    v = x.var(dim=axis, keepdim=True, unbiased=False)
    return (x - m) / torch.sqrt(v + eps)
def _scatter_add(tgt, idx, src, axis=0):
    return tgt.clone().index_add_(axis, idx, src)
def _segment_sum(src, seg, n):
    out = torch.zeros((n,) + src.shape[1:], dtype=src.dtype)
    return out.index_add_(0, seg, src)
def _pad(x, pw):
    flat = tuple(v for pair in reversed(pw) for v in pair)
    return torch.nn.functional.pad(x, flat)

kernel_name = 'concat_heads__gqa_block_cached__gqa_block_cached__near_ridge'

def setup_inputs():

    _w = (lambda a: (lambda t: t.to(torch.bfloat16) if t.is_floating_point() else t)(torch.as_tensor(a)))
    def _A_setup():
        B, Sq, D = 8, 96, 640
        Hq, Hkv, Sk, Dh = 32, 32, 512, 128
        assert Hq % Hkv == 0, (Hq, Hkv)
        return {
            "x": _w((lambda *s: torch.randn(*s, dtype=torch.bfloat16) * 0.8)(B, Sq, D)),
            "k_cache": _w((lambda *s: torch.randn(*s, dtype=torch.bfloat16) * 0.8)(B, Hkv, Sk, Dh)),
            "v_cache": _w((lambda *s: torch.randn(*s, dtype=torch.bfloat16) * 0.05)(B, Hkv, Sk, Dh)),
            "wq": _w((lambda *s: torch.randn(*s, dtype=torch.bfloat16) * 0.8)(D, Hq * Dh) * (D ** -0.5)),
            "wo": _w((lambda *s: torch.randn(*s, dtype=torch.bfloat16) * 0.05)(Hq * Dh, D) * ((Hq * Dh) ** -0.5)),
        }
    _A_in = _A_setup()

    def _B_setup():
        B, Sq, D = 8, 96, 640
        Hq, Hkv, Sk, Dh = 32, 32, 512, 128
        assert Hq % Hkv == 0, (Hq, Hkv)
        return {
            "x": _w((lambda *s: torch.randn(*s, dtype=torch.bfloat16) * 0.8)(B, Sq, D)),
            "k_cache": _w((lambda *s: torch.randn(*s, dtype=torch.bfloat16) * 0.8)(B, Hkv, Sk, Dh)),
            "v_cache": _w((lambda *s: torch.randn(*s, dtype=torch.bfloat16) * 0.05)(B, Hkv, Sk, Dh)),
            "wq": _w((lambda *s: torch.randn(*s, dtype=torch.bfloat16) * 0.8)(D, Hq * Dh) * (D ** -0.5)),
            "wo": _w((lambda *s: torch.randn(*s, dtype=torch.bfloat16) * 0.05)(Hq * Dh, D) * ((Hq * Dh) ** -0.5)),
        }
    _B_in = _B_setup()

    return {
        "A_x": _A_in["x"],
        "A_k_cache": _A_in["k_cache"],
        "A_v_cache": _A_in["v_cache"],
        "A_wq": _A_in["wq"],
        "A_wo": _A_in["wo"],
        "B_x": _B_in["x"],
        "B_k_cache": _B_in["k_cache"],
        "B_v_cache": _B_in["v_cache"],
        "B_wq": _B_in["wq"],
        "B_wo": _B_in["wo"],
    }

def reference(A_x, A_k_cache, A_v_cache, A_wq, A_wo, B_x, B_k_cache, B_v_cache, B_wq, B_wo):
    def _A_ref(x, k_cache, v_cache, wq, wo):
        B, Sq, D = x.shape
        Hq, Dh = 32, 128
        Hkv = k_cache.shape[1]
        rep = Hq // Hkv
        q = (lambda x, *d: x.permute(*d))((x @ wq).reshape(B, Sq, Hq, Dh), 0, 2, 1, 3)
        k = (lambda x, n, axis: torch.repeat_interleave(x, n, dim=axis))(k_cache, rep, axis=1)
        v = (lambda x, n, axis: torch.repeat_interleave(x, n, dim=axis))(v_cache, rep, axis=1)
        scores = torch.einsum("bhqd,bhkd->bhqk", q, k) * (Dh ** -0.5)
        p = _softmax(scores, axis=-1)
        o = torch.einsum("bhqk,bhkd->bhqd", p, v)
        return (lambda x, *d: x.permute(*d))(o, 0, 2, 1, 3).reshape(B, Sq, Hq * Dh) @ wo

    def _B_ref(x, k_cache, v_cache, wq, wo):
        B, Sq, D = x.shape
        Hq, Dh = 32, 128
        Hkv = k_cache.shape[1]
        rep = Hq // Hkv
        q = (lambda x, *d: x.permute(*d))((x @ wq).reshape(B, Sq, Hq, Dh), 0, 2, 1, 3)
        k = (lambda x, n, axis: torch.repeat_interleave(x, n, dim=axis))(k_cache, rep, axis=1)
        v = (lambda x, n, axis: torch.repeat_interleave(x, n, dim=axis))(v_cache, rep, axis=1)
        scores = torch.einsum("bhqd,bhkd->bhqk", q, k) * (Dh ** -0.5)
        p = _softmax(scores, axis=-1)
        o = torch.einsum("bhqk,bhkd->bhqd", p, v)
        return (lambda x, *d: x.permute(*d))(o, 0, 2, 1, 3).reshape(B, Sq, Hq * Dh) @ wo

    a = _A_ref(A_x, A_k_cache, A_v_cache, A_wq, A_wo)
    b = _B_ref(B_x, B_k_cache, B_v_cache, B_wq, B_wo)
    return torch.concatenate([a, b], axis=-1)
```

```python
KN = "concat_heads__gqa_block_cached__gqa_block_cached__near_ridge_kernel"
HEADER = open("concat_heads__gqa_block_cached__gqa_block_cached__near_ridge.s.ref").read().split("; @launch")[0]

class Asm:
    def __init__(self):
        self.lines = []
        self.nlabel = 0
    def __call__(self, s, *args):
        for ln in s.strip("\n").split("\n"):
            ln = ln.strip()
            if not ln:
                continue
            if ln.endswith(":") or ln.startswith("."):
                self.lines.append(ln)
            else:
                self.lines.append("    " + ln)
    def c(self, s):
        self.lines.append("    ; " + s)
    def label(self, stem="L"):
        self.nlabel += 1
        return "%s_%d" % (stem, self.nlabel)
    def text(self):
        return "\n".join(self.lines) + "\n"

def kernel_begin(name):
    return (".globl %s\n.p2align 8\n.type %s,@function\n%s:\n" % (name, name, name))

def kernel_desc(name, vgpr, sgpr=102, accum=None):
    if accum is None:
        accum = min(256, (vgpr + 3) // 4 * 4)
    return (""".amdhsa_kernel %s
  .amdhsa_next_free_vgpr %d
  .amdhsa_next_free_sgpr %d
  .amdhsa_accum_offset %d
  .amdhsa_group_segment_fixed_size 0
  .amdhsa_kernarg_size 104
  .amdhsa_user_sgpr_count 2
  .amdhsa_user_sgpr_kernarg_segment_ptr 1
  .amdhsa_system_sgpr_workgroup_id_x 1
.end_amdhsa_kernel
""" % (name, vgpr, sgpr, accum))

def build_file(launches, kernels):
    s = HEADER
    if len(launches) == 1 and launches[0][0] is None:
        _, g, b, l = launches[0]
        s += "; @launch grid=(%d,1,1) block=(%d,1,1) lds=%d\n" % (g, b, l)
    else:
        for n, g, b, l in launches:
            s += "; @launch kernel=%s grid=(%d,1,1) block=(%d,1,1) lds=%d\n" % (n, g, b, l)
    s += '.amdgcn_target "amdgcn-amd-amdhsa--gfx950"\n.text\n'
    for name, body, vgpr, sgpr, accum in kernels:
        s += kernel_begin(name) + body
    s += '.section .rodata,"a"\n'
    for name, body, vgpr, sgpr, accum in kernels:
        s += ".p2align 6\n" + kernel_desc(name, vgpr, sgpr, accum)
    return s
```

```python
import sys, struct, argparse
from asmgen import *

MFMA = "v_mfma_f32_16x16x32_bf16"
def vr(b, n=4): return f"v[{b}:{b+n-1}]" if n > 1 else f"v{b}"
def f32bits(x): return struct.unpack("<I", struct.pack("<f", x))[0]

SLOT = 16384
WQB0 = 90112
XB0 = 139264
QX = 114688
LDS_BYTES = 163840
sW, sBR, sHP, sB, sT0, sT1, sT2 = 3, 4, 5, 6, 7, 44, 45
SRD_K, SRD_V, SRD_WQ, SRD_X, SRD_WS, SRD_WO, SRD_OUT, SRD_DBG = 8, 12, 16, 20, 24, 28, 32, 36
sOFF, sSC, sM0B, sJ = 40, 41, 42, 43
sSTAMP = 60
def srd(s): return f"s[{s}:{s+3}]"
vLANE, vG, vC, vT0, vT1, vT2, vT3 = 240, 241, 242, 243, 251, 252, 253
vKD, vVD, vJUNK = 244, 248, 250
vKA, vVA, vLACC = 224, 228, 236
vRCP, vMC, vOST = 254, 255, 223
vONES = 216
vQ = 128
vFR = 160
qACC = 0
qSET = [(48, 64), (76, 92)]
vWA, vXA, vD = 104, 108, 110

class Cfg:
    fused = False
    stamps = False
    nt_kv = " nt"
    pol_w = ""
    pol_touch = ""
    pol_ost = " sc1"
    pol_old = " sc1"
    touch = True

def stamp(a, cfg, idx):
    if cfg.stamps:
        a(f"s_memrealtime s[{sSTAMP+2*idx}:{sSTAMP+2*idx+1}]")
        a("s_waitcnt lgkmcnt(0)")

def write_stamps(a, cfg, first, n, nrec=16):
    if not cfg.stamps: return
    a("s_mov_b64 exec, 1")
    a(f"s_mul_i32 s{sT0}, s2, {nrec*8}")
    a(f"s_add_u32 s{sT0}, s{sT0}, 0x8000000")
    a("v_mov_b32 v0, 0")
    for k in range(first, first + n):
        a(f"v_mov_b32 v2, s{sSTAMP+2*k}")
        a(f"v_mov_b32 v3, s{sSTAMP+2*k+1}")
        a(f"buffer_store_dwordx2 v[2:3], v0, {srd(SRD_DBG)}, s{sT0} offen offset:{8*k}")
        a("s_nop 1")
    a("s_mov_b64 exec, -1")

def make_srd(a, s, ptr, off_s, nrec):
    if off_s is not None:
        a(f"s_add_u32 s{s}, s{s}, s{off_s}")
        a(f"s_addc_u32 s{s+1}, s{s+1}, 0")
    a(f"s_and_b32 s{s+1}, s{s+1}, 0xffff")
    a(f"s_mov_b32 s{s+2}, {nrec}" if not isinstance(nrec, str) else f"s_mov_b32 s{s+2}, {nrec}")
    a(f"s_mov_b32 s{s+3}, 0x20000")

def interleave(main, fill, start=0, every=1):
    out = []; fi = 0
    for i, m in enumerate(main):
        out.append(m)
        if i >= start and (i - start) % every == 0 and fi < len(fill):
            out.append(fill[fi]); fi += 1
    out.extend(fill[fi:])
    return out

def emit(a, items):
    for it in items: a(it)

def k1_prologue(a, cfg):
    a(f"""
    s_cmp_ge_u32 s2, 256
    s_cbranch_scc1 L_end
    """)
    stamp(a, cfg, 0)
    a(f"""
    s_and_b32 s{sT0}, s2, 7
    s_lshr_b32 s{sJ}, s2, 3
    s_lshr_b32 s{sBR}, s{sT0}, 2
    s_mul_i32 s{sT1}, s{sBR}, 40
    s_add_u32 s{sT1}, s0, s{sT1}
    s_addc_u32 s{sT2}, s1, 0
    s_load_dwordx2 s[{SRD_X}:{SRD_X+1}], s[{sT1}:{sT2}], 0
    s_load_dwordx2 s[{SRD_K}:{SRD_K+1}], s[{sT1}:{sT2}], 8
    s_load_dwordx2 s[{SRD_V}:{SRD_V+1}], s[{sT1}:{sT2}], 16
    s_load_dwordx2 s[{SRD_WQ}:{SRD_WQ+1}], s[{sT1}:{sT2}], 24
    s_load_dwordx2 s[{SRD_WO}:{SRD_WO+1}], s[{sT1}:{sT2}], 32
    s_load_dwordx2 s[{SRD_OUT}:{SRD_OUT+1}], s[0:1], 80
    s_load_dwordx2 s[{SRD_WS}:{SRD_WS+1}], s[0:1], 96
    s_load_dwordx2 s[{SRD_DBG}:{SRD_DBG+1}], s[0:1], {96 if cfg.stamps else 88}
    v_lshrrev_b32 v1, 6, v0
    v_and_b32 v{vLANE}, 63, v0
    s_and_b32 s{sT0}, s{sT0}, 3
    v_readfirstlane_b32 s{sW}, v1
    s_lshl_b32 s{sT0}, s{sT0}, 2
    s_lshr_b32 s{sHP}, s{sJ}, 3
    s_add_u32 s{sHP}, s{sHP}, s{sT0}
    s_and_b32 s{sB}, s{sJ}, 7
    v_lshrrev_b32 v{vG}, 4, v{vLANE}
    v_and_b32 v{vC}, 15, v{vLANE}
    s_lshl_b32 s46, s{sB}, 5
    s_add_u32 s46, s46, s{sHP}
    s_lshl_b32 s46, s46, 17
    s_lshl_b32 s47, s{sHP}, 8
    s_mul_i32 s48, s{sB}, 122880
    s_sub_u32 s49, {640*8192}, s47
    s_waitcnt lgkmcnt(0)
    """)
    make_srd(a, SRD_X, None, 48, 122880)
    make_srd(a, SRD_WQ, None, 47, "s49")
    make_srd(a, SRD_K, None, 46, 0x220000)
    make_srd(a, SRD_V, None, 46, 0x220000)

def k1_late_srds(a, cfg):
    a(f"""
    s_mul_i32 s46, s{sBR}, 48
    s_mul_i32 s47, s{sB}, 6
    s_add_u32 s46, s46, s47
    s_lshl_b32 s46, s46, 17
    s_lshl_b32 s47, s{sHP}, 12
    s_add_u32 s50, s46, s47
    """)
    make_srd(a, SRD_WS, None, None, 2*48*128*1024)
    make_srd(a, SRD_DBG, None, None, 0x10000000 if cfg.stamps else 256)

def qproj_addrs(a):
    a(f"""
    v_bfe_u32 v{vT0}, v{vLANE}, 2, 2
    v_and_b32 v{vT1}, 3, v{vLANE}
    v_and_b32 v{vT2}, 1, v{vG}
    v_lshl_add_u32 v{vT2}, v{vT2}, 2, v{vT0}
    s_and_b32 s46, s{sW}, 1
    s_lshl_b32 s46, s46, 2
    v_xor_b32 v{vT2}, s46, v{vT2}
    v_lshlrev_b32 v{vT2}, 5, v{vT2}
    v_lshl_add_u32 v{vT2}, v{vT1}, 3, v{vT2}
    v_lshl_add_u32 v{vT3}, v{vG}, 3, v{vT0}
    v_lshl_add_u32 v{vT2}, v{vT3}, 8, v{vT2}
    s_bfe_u32 s46, s{sW}, 0x10001
    s_lshl_b32 s46, s46, 13
    s_add_u32 s46, s46, {WQB0}
    v_add_u32 v{vWA}, s46, v{vT2}
    v_xor_b32 v{vWA+1}, 32, v{vWA}
    v_xor_b32 v{vWA+2}, 64, v{vWA}
    v_xor_b32 v{vWA+3}, 0x60, v{vWA}
    v_lshrrev_b32 v{vT0}, 1, v{vC}
    v_xor_b32 v{vT0}, v{vG}, v{vT0}
    v_lshlrev_b32 v{vT0}, 4, v{vT0}
    v_lshl_add_u32 v{vT0}, v{vC}, 7, v{vT0}
    s_lshr_b32 s46, s{sW}, 2
    s_mul_i32 s46, s46, {48*128}
    s_add_u32 s46, s46, {XB0}
    v_add_u32 v{vXA}, s46, v{vT0}
    v_xor_b32 v{vXA+1}, 64, v{vXA}
    """)

def attn_addrs(a, cfg):
    a(f"""
    v_xor_b32 v{vT0}, v{vG}, v{vC}
    v_lshlrev_b32 v{vT0}, 4, v{vT0}
    v_lshl_add_u32 v{vKA}, v{vC}, 8, v{vT0}
    v_xor_b32 v{vKA+1}, 64, v{vKA}
    v_xor_b32 v{vKA+2}, 0x80, v{vKA}
    v_xor_b32 v{vKA+3}, 0xc0, v{vKA}
    v_bfe_u32 v{vT0}, v{vLANE}, 2, 2
    v_and_b32 v{vT1}, 3, v{vLANE}
    v_and_b32 v{vT2}, 1, v{vG}
    v_lshl_add_u32 v{vT2}, v{vT2}, 2, v{vT0}
    v_lshlrev_b32 v{vT2}, 5, v{vT2}
    v_lshl_add_u32 v{vT2}, v{vT1}, 3, v{vT2}
    v_lshl_add_u32 v{vT3}, v{vG}, 2, v{vT0}
    v_lshl_add_u32 v{vVA}, v{vT3}, 8, v{vT2}
    """)
    for dt in range(1, 8):
        a(f"v_xor_b32 v{vVA+dt}, {32*dt}, v{vVA}")
    for r in range(4):
        a(f"v_mov_b32 v{vONES+r}, 0x3f803f80")
    a(f"""
    s_lshl_b32 s46, s{sW}, 17
    v_lshlrev_b32 v{vOST}, 4, v{vLANE}
    v_add_u32 v{vOST}, s46, v{vOST}
    s_mov_b32 s{sSC}, {hex(f32bits((128 ** -0.5) * 1.4426950408889634))}
    """)

def wq_issue(cfg, i):
    pre = f"s_add_u32 m0, s{sM0B}, {16384*(i%3)}\ns_mov_b32 s{sOFF}, {i*262144}"
    out = []
    for m in range(4):
        s = f"buffer_load_dwordx4 v{vD+m}, {srd(SRD_WQ)}, s{sOFF} offen offset:{1024*m}{cfg.pol_w} lds"
        out.append((pre + "\n" + s) if m == 0 else s)
    return out

def x_issue(cfg, n):
    out = []
    for m in range(6):
        s = f"buffer_load_dwordx4 v{vD+m}, {srd(SRD_X)}, s{sOFF} offen offset:{1024*(m&3)}{cfg.pol_w} lds"
        if m == 0: s = f"s_add_u32 m0, s{sM0B}, {12288*(n%2)}\ns_mov_b32 s{sOFF}, {n*128}\n" + s
        if m == 4: s = f"s_add_u32 m0, s{sM0B}, {12288*(n%2)+4096}\ns_nop 0\n" + s
        out.append(s)
    return out

def kv_issue(cfg, i):
    hh, r = i >> 4, i & 15
    isK = r < 8
    base = hh * 0x200000 + (r & 7) * SLOT
    out = []
    for m in range(8):
        v = vKD + (m & 3) if isK else vVD + (m & 1)
        s = f"buffer_load_dwordx4 v{v}, {srd(SRD_K if isK else SRD_V)}, s{sOFF} offen offset:{1024*(m&3)}{cfg.nt_kv} lds"
        if (m & 3) == 0:
            s = f"s_add_u32 m0, s{sM0B}, {(i%8)*SLOT + (m>>2)*4096}\ns_mov_b32 s{sOFF}, {base + (m>>2)*4096}\n" + s
        out.append(s)
    return out

def qproj_reads(i):
    A, B = qSET[i % 2]
    out = []
    def rb(j): return f"ds_read_b128 {vr(B+4*j)}, v{vXA+(i&1)} offset:{12288*((i>>1)%2)+2048*j}"
    def ra(i4): return [f"ds_read_b64_tr_b16 {vr(A+4*i4+2*h,2)}, v{vWA+i4} offset:{16384*(i%3)+1024*h}" for h in range(2)]
    return [rb(0)] + ra(0) + [rb(1), rb(2)] + ra(1) + ra(2) + ra(3)

def qproj_mfmas(i):
    A, B = qSET[i % 2]
    out = []
    for i4 in range(4):
        for j in range(3):
            acc = qACC + (i4*3+j)*4
            c = "0" if i == 0 else vr(acc)
            out.append(f"{MFMA} {vr(acc)}, {vr(A+4*i4)}, {vr(B+4*j)}, {c}")
    return out

def qproj(a, cfg, role):
    for i in range(20):
        if role == "W": a(f"s_waitcnt vmcnt({4 if i < 19 else 0})")
        if role == "X" and i % 2 == 0: a(f"s_waitcnt vmcnt({6 if i == 0 else 0})")
        a("s_waitcnt lgkmcnt(0)")
        a("s_barrier")
        if role == "W" and i in (0, 1, 10): stamp(a, cfg, {0: 1, 1: 2, 10: 3}[i])
        dma = []
        if role == "W" and i + 2 < 20: dma = wq_issue(cfg, i + 2)
        if role == "X" and i % 2 == 0 and i >= 2 and i // 2 + 1 < 10: dma = x_issue(cfg, i // 2 + 1)
        rd = qproj_reads(i)
        if i == 0:
            emit(a, rd + dma)
        else:
            mm = qproj_mfmas(i - 1)
            emit(a, interleave(mm, interleave(rd, dma, 1, 2) if dma else rd))
    a("s_waitcnt lgkmcnt(0)")
    a("s_barrier")
    if role == "P":
        emit(a, interleave(qproj_mfmas(19), kv_issue(cfg, 5) + kv_issue(cfg, 6)))
    else:
        emit(a, qproj_mfmas(19))
    a(f"""
    s_and_b32 s46, s{sW}, 1
    s_lshl_b32 s46, s46, 3
    v_lshrrev_b32 v{vT0}, 1, v{vG}
    v_or_b32 v{vT0}, s46, v{vT0}
    v_xor_b32 v{vT0}, v{vT0}, v{vC}
    v_lshlrev_b32 v{vT0}, 4, v{vT0}
    v_and_b32 v{vT1}, 1, v{vG}
    v_lshl_add_u32 v{vT0}, v{vT1}, 3, v{vT0}
    v_lshl_add_u32 v{vT0}, v{vC}, 9, v{vT0}
    s_lshr_b32 s46, s{sW}, 2
    s_mul_i32 s46, s46, {48*512}
    s_bfe_u32 s47, s{sW}, 0x10001
    s_lshl_b32 s47, s47, 8
    s_add_u32 s46, s46, s47
    s_add_u32 s46, s46, {QX}
    v_add_u32 v{vT0}, s46, v{vT0}
    s_nop 1
    """)
    for i4 in range(4):
        if i4: a(f"v_xor_b32 v{vT1}, {32*i4}, v{vT0}")
        for j in range(3):
            acc = qACC + (i4*3+j)*4
            a(f"v_cvt_pk_bf16_f32 v{acc}, v{acc}, v{acc+1}")
            a(f"v_cvt_pk_bf16_f32 v{acc+1}, v{acc+2}, v{acc+3}")
            a(f"ds_write_b64 v{vT1 if i4 else vT0}, {vr(acc,2)} offset:{8192*j}")
    a("s_waitcnt lgkmcnt(0)")
    a("s_barrier")

def attn_step_k(a, hh, r):
    slot = r
    off = (slot & 3) * SLOT
    Q = vQ + 16 * hh
    def fr(kt, s): return vFR + ((kt * 4 + s) % 12) * 4
    def rd(kt): return [f"ds_read_b128 {vr(fr(kt,s))}, v{vKA+s} offset:{off+4096*kt}" for s in range(4)]
    def mm(kt):
        S = (4 * r + kt) * 4
        return [f"{MFMA} {vr(S)}, {vr(fr(kt,s))}, {vr(Q+4*s)}, {'0' if s == 0 else vr(S)}" for s in range(4)]
    emit(a, rd(0) + rd(1) + rd(2))
    a("s_waitcnt lgkmcnt(8)")
    emit(a, mm(0))
    emit(a, rd(3))
    a("s_waitcnt lgkmcnt(8)")
    emit(a, mm(1))
    a("s_waitcnt lgkmcnt(4)")
    emit(a, mm(2))
    a("s_waitcnt lgkmcnt(0)")
    emit(a, mm(3))
    if r in (3, 7):
        for s in range(4): a(f"v_xor_b32 v{vKA+s}, 0x10000, v{vKA+s}")

vO = 64
def attn_step_v(a, hh, r):
    slot = r
    off = (slot & 3) * SLOT
    NB = 7
    seq = [(u, dt) for u in range(2) for dt in range(8)]
    def fr(n): return vFR + (n % 14) * 4
    def rd(n):
        u, dt = seq[n]
        return [f"ds_read_b64_tr_b16 {vr(fr(n)+2*h,2)}, v{vVA+dt} offset:{off+8192*u+4096*h}" for h in range(2)]
    for n in range(NB): emit(a, rd(n))
    for n in range(16):
        u, dt = seq[n]
        issued = min(16, n + NB)
        a(f"s_waitcnt lgkmcnt({2*(issued-n-1)})")
        first = (r == 0 and u == 0)
        a(f"{MFMA} {vr(vO+4*dt)}, {vr(fr(n))}, {vr(4*(2*r+u))}, {'0' if first else vr(vO+4*dt)}")
        if n + NB < 16: emit(a, rd(n + NB))
    if r in (3, 7):
        for d in range(8): a(f"v_xor_b32 v{vVA+d}, 0x10000, v{vVA+d}")

def softmax(a):
    M = [vT0, vT1, vT2, vT3]
    a("s_nop 3")
    for q in range(4): a(f"v_max3_f32 v{M[q]}, v{32*q}, v{32*q+1}, v{32*q+2}")
    for k in range(14):
        for q in range(4): a(f"v_max3_f32 v{M[q]}, v{M[q]}, v{32*q+3+2*k}, v{32*q+4+2*k}")
    for q in range(4): a(f"v_max_f32 v{M[q]}, v{M[q]}, v{32*q+31}")
    a(f"""
    v_max3_f32 v{vT0}, v{vT0}, v{vT1}, v{vT2}
    v_max_f32 v{vT0}, v{vT0}, v{vT3}
    v_mov_b32 v{vT1}, v{vT0}
    s_nop 1
    v_permlane32_swap_b32 v{vT0}, v{vT1}
    v_max_f32 v{vT0}, v{vT0}, v{vT1}
    v_mov_b32 v{vT1}, v{vT0}
    s_nop 1
    v_permlane16_swap_b32 v{vT0}, v{vT1}
    v_max_f32 v{vT0}, v{vT0}, v{vT1}
    v_mul_f32 v{vMC}, s{sSC}, v{vT0}
    """)
    for u in range(16):
        for k in range(8): a(f"v_fma_f32 v{8*u+k}, v{8*u+k}, s{sSC}, -v{vMC}")
        if u > 0:
            pu = u - 1
            a(f"{MFMA} {vr(vLACC)}, {vr(vONES)}, {vr(4*pu)}, {'0' if pu == 0 else vr(vLACC)}")
        for k in range(8): a(f"v_exp_f32 v{8*u+k}, v{8*u+k}")
        a("s_nop 0")
        for k in range(4): a(f"v_cvt_pk_bf16_f32 v{4*u+k}, v{8*u+2*k}, v{8*u+2*k+1}")
    a("s_nop 1")
    a(f"{MFMA} {vr(vLACC)}, {vr(vONES)}, {vr(60)}, {vr(vLACC)}")

def attention(a, cfg):
    a(f"""
    s_lshl_b32 s46, s{sW}, 13
    s_add_u32 s46, s46, {QX}
    v_lshlrev_b32 v{vT0}, 8, v{vC}
    v_add_u32 v{vT0}, s46, v{vT0}
    """)
    for s in range(4):
        a(f"v_add_u32 v{vT1}, v{vT0}, v{vKA+s}")
        for hh in range(2):
            a(f"ds_read_b128 {vr(vQ+16*hh+4*s)}, v{vT1} offset:{256*hh}")
    stamp(a, cfg, 4)
    for hh in range(2):
        for r in range(8):
            a("s_waitcnt lgkmcnt(0)")
            a("s_barrier")
            if r == 0: stamp(a, cfg, 5 + 4 * hh)
            attn_step_k(a, hh, r)
        stamp(a, cfg, 6 + 4 * hh)
        softmax(a)
        stamp(a, cfg, 7 + 4 * hh)
        for r in range(8):
            a("s_barrier")
            if r == 1:
                a(f"v_rcp_f32 v{vRCP}, v{vLACC}")
            attn_step_v(a, hh, r)
        a("s_nop 7")
        for u in range(4):
            for k in range(8): a(f"v_mul_f32 v{vO+8*u+k}, v{vRCP}, v{vO+8*u+k}")
            for k in range(4): a(f"v_cvt_pk_bf16_f32 v{vO+8*u+k}, v{vO+8*u+2*k}, v{vO+8*u+2*k+1}")
            if u == 0: a(f"s_add_u32 s{sOFF}, s50, {hh*16*4096}")
            a(f"buffer_store_dwordx4 {vr(vO+8*u)}, v{vOST}, {srd(SRD_WS)}, s{sOFF} offen offset:{1024*u}{cfg.pol_ost}")
        stamp(a, cfg, 8 + 4 * hh)

def producer(a, cfg):
    for i in range(32):
        a(f"s_waitcnt vmcnt({8*(min(i+6,31)-i)})")
        a("s_barrier")
        if i + 7 < 32: emit(a, kv_issue(cfg, i + 7))

def gen_k1(cfg):
    a = Asm()
    k1_prologue(a, cfg)
    a(f"""
    s_cmp_ge_u32 s{sW}, 6
    s_cbranch_scc1 L_prod
    s_cmp_ge_u32 s{sW}, 4
    s_cbranch_scc1 L_xw
    """)
    a(f"""
    v_lshlrev_b32 v{vT0}, 1, v{vG}
    v_xor_b32 v{vT0}, v{vT0}, v{vC}
    v_lshlrev_b32 v{vT0}, 4, v{vT0}
    v_lshl_add_u32 v{vT0}, v{vG}, 13, v{vT0}
    s_and_b32 s46, s{sW}, 1
    s_lshl_b32 s46, s46, 17
    s_lshr_b32 s47, s{sW}, 1
    s_lshl_b32 s47, s47, 12
    s_add_u32 s46, s46, s47
    v_add_u32 v{vD}, s46, v{vT0}
    v_add_u32 v{vD+1}, {32768-1024}, v{vD}
    v_xor_b32 v{vT0}, 0x80, v{vD}
    v_add_u32 v{vD+2}, {2*(32768-1024)}, v{vT0}
    v_add_u32 v{vD+3}, {3*(32768-1024)}, v{vT0}
    s_lshl_b32 s{sM0B}, s{sW}, 12
    s_add_u32 s{sM0B}, s{sM0B}, {WQB0}
    """)
    emit(a, wq_issue(cfg, 0) + wq_issue(cfg, 1))
    qproj_addrs(a); attn_addrs(a, cfg); k1_late_srds(a, cfg)
    qproj(a, cfg, "W")
    a("s_branch L_attn")
    a("L_xw:")
    a(f"""
    v_and_b32 v{vT0}, 7, v{vLANE}
    v_xor_b32 v{vT0}, v{vT0}, v{vG}
    v_lshlrev_b32 v{vT0}, 4, v{vT0}
    v_lshrrev_b32 v{vT1}, 3, v{vLANE}
    v_mul_u32_u24 v{vT1}, 1280, v{vT1}
    s_sub_u32 s46, s{sW}, 4
    s_mul_i32 s47, s46, {48*1280}
    v_add_u32 v{vT1}, s47, v{vT1}
    v_xor_b32 v{vT2}, 64, v{vT0}
    v_add_u32 v{vT0}, v{vT0}, v{vT1}
    v_add_u32 v{vT2}, v{vT2}, v{vT1}
    """)
    for m in range(6):
        a(f"v_add_u32 v{vD+m}, {8*1280*m - 1024*(m&3)}, v{vT2 if m & 1 else vT0}")
    a(f"""
    s_mul_i32 s{sM0B}, s46, 6144
    s_add_u32 s{sM0B}, s{sM0B}, {XB0}
    """)
    emit(a, x_issue(cfg, 0) + x_issue(cfg, 1))
    qproj_addrs(a); attn_addrs(a, cfg); k1_late_srds(a, cfg)
    qproj(a, cfg, "X")
    a("L_attn:")
    attention(a, cfg)
    if cfg.stamps:
        a(f"s_cmp_lg_u32 s{sW}, 0\ns_cbranch_scc1 L_end")
        write_stamps(a, cfg, 0, 13)
    a("s_endpgm")
    a("L_prod:")
    a(f"s_sub_u32 s46, s{sW}, 6")
    if cfg.touch:
        a(f"""
        v_lshrrev_b32 v{vT0}, 3, v{vLANE}
        v_lshlrev_b32 v{vT0}, 16, v{vT0}
        v_bfe_u32 v{vT1}, v{vLANE}, 2, 1
        v_lshl_add_u32 v{vT0}, v{vT1}, 12, v{vT0}
        v_and_b32 v{vT1}, 3, v{vLANE}
        v_lshl_add_u32 v{vT0}, v{vT1}, 6, v{vT0}
        s_lshl_b32 s47, s{sB}, 13
        s_lshl_b32 s48, s46, 19
        s_add_u32 s47, s47, s48
        v_add_u32 v{vT0}, s47, v{vT0}
        v_lshlrev_b32 v{vT1}, 6, v{vLANE}
        s_lshr_b32 s47, s{sJ}, 3
        s_mul_i32 s47, s47, 30720
        s_lshl_b32 s48, s46, 12
        s_add_u32 s47, s47, s48
        v_add_u32 v{vT1}, s47, v{vT1}
        """)
        for n in range(5):
            a(f"s_mov_b32 s{sOFF}, {n*2*524288}")
            a(f"buffer_load_dword v{vJUNK}, v{vT0}, {srd(SRD_WQ)}, s{sOFF} offen{cfg.pol_touch}")
            if n < 4:
                a(f"s_mov_b32 s{sOFF}, {n*8192}")
                a(f"buffer_load_dword v{vJUNK}, v{vT1}, {srd(SRD_X)}, s{sOFF} offen{cfg.pol_touch}")
    a(f"""
    v_xor_b32 v{vT0}, v{vG}, v{vC}
    v_lshlrev_b32 v{vT0}, 4, v{vT0}
    v_lshl_add_u32 v{vT0}, v{vG}, 8, v{vT0}
    s_lshl_b32 s{sM0B}, s46, 13
    v_add_u32 v{vKD}, s{sM0B}, v{vT0}
    v_xor_b32 v{vKD+1}, 64, v{vKD}
    v_xor_b32 v{vKD+2}, 0x80, v{vKD}
    v_xor_b32 v{vKD+3}, 0xc0, v{vKD}
    """)
    for i in range(5): emit(a, kv_issue(cfg, i))
    a(f"""
    v_lshlrev_b32 v{vT0}, 1, v{vG}
    v_xor_b32 v{vT0}, v{vT0}, v{vC}
    v_lshlrev_b32 v{vT0}, 4, v{vT0}
    v_lshl_add_u32 v{vT0}, v{vG}, 8, v{vT0}
    v_add_u32 v{vVD}, s{sM0B}, v{vT0}
    v_xor_b32 v{vVD+1}, 0x80, v{vVD}
    """)
    qproj_addrs(a)
    qproj(a, cfg, "P")
    producer(a, cfg)
    a("L_end:\ns_endpgm")
    return a.text()

oACC, oO, oA, oVO, oVW, oRA = 0, 64, 128, 160, 164, 168
def oproj_setup(a, cfg, need_ids=True):
    a(f"""
    s_mul_i32 s46, s{sJ}, 43
    s_lshr_b32 s46, s46, 8
    s_mul_i32 s47, s46, 6
    s_sub_u32 s47, s{sJ}, s47
    s_bfe_u32 s48, s2, 0x10001
    s_mul_i32 s48, s48, 6
    s_add_u32 s51, s47, s48
    s_and_b32 s48, s2, 1
    s_mul_i32 s48, s48, 5
    s_add_u32 s52, s46, s48
    """)
    a(f"""
    s_lshl_b32 s46, s52, 7
    s_sub_u32 s49, {4096*1280}, s46
    """)
    make_srd(a, SRD_WO, None, 46, "s49")
    a(f"""
    s_mul_i32 s46, s{sBR}, 48
    s_lshl_b32 s47, s51, 2
    s_add_u32 s46, s46, s47
    s_lshl_b32 s53, s46, 17
    v_lshlrev_b32 v{vT0}, 4, v{vLANE}
    s_lshl_b32 s46, s{sW}, 10
    s_add_u32 s46, s46, s53
    v_add_u32 v{oVO}, s46, v{vT0}
    v_add_u32 v{oVO+1}, 0x20000, v{oVO}
    v_add_u32 v{oVO+2}, 0x40000, v{oVO}
    v_add_u32 v{oVO+3}, 0x60000, v{oVO}
    v_and_b32 v{vT0}, 7, v{vLANE}
    v_lshlrev_b32 v{vT1}, 1, v{vG}
    v_xor_b32 v{vT0}, v{vT0}, v{vT1}
    v_lshlrev_b32 v{vT0}, 4, v{vT0}
    v_lshrrev_b32 v{vT1}, 3, v{vLANE}
    v_mul_u32_u24 v{vT1}, 1280, v{vT1}
    s_mul_i32 s46, s{sW}, {32*1280}
    v_add3_u32 v{oVW}, v{vT0}, v{vT1}, s46
    v_add_u32 v{oVW+1}, {8*1280-1024}, v{oVW}
    v_add_u32 v{oVW+2}, {2*(8*1280-1024)}, v{oVW}
    v_add_u32 v{oVW+3}, {3*(8*1280-1024)}, v{oVW}
    s_lshl_b32 s{sM0B}, s{sW}, 14
    v_bfe_u32 v{vT0}, v{vLANE}, 2, 2
    v_and_b32 v{vT1}, 3, v{vLANE}
    v_and_b32 v{vT2}, 1, v{vG}
    v_lshlrev_b32 v{vT2}, 1, v{vT2}
    v_lshrrev_b32 v{vT3}, 1, v{vT0}
    v_add_u32 v{vT2}, v{vT2}, v{vT3}
    v_lshlrev_b32 v{vT2}, 5, v{vT2}
    v_lshl_add_u32 v{vT2}, v{vT1}, 3, v{vT2}
    v_lshl_add_u32 v{vT3}, v{vG}, 2, v{vT0}
    v_lshl_add_u32 v{vT2}, v{vT3}, 7, v{vT2}
    v_add_u32 v{oRA}, s{sM0B}, v{vT2}
    v_xor_b32 v{oRA+1}, 32, v{oRA}
    v_xor_b32 v{oRA+2}, 64, v{oRA}
    v_xor_b32 v{oRA+3}, 0x60, v{oRA}
    """)

def o_issue_w(cfg, it):
    out = []
    for n in range(4):
        s = f"buffer_load_dwordx4 v{oVW+n}, {srd(SRD_WO)}, s{sOFF} offen offset:{1024*n}{cfg.pol_w} lds"
        if n == 0: s = f"s_add_u32 m0, s{sM0B}, {4096*(it%4)}\ns_mov_b32 s{sOFF}, {it*256*1280}\n" + s
        out.append(s)
    return out
def o_issue_o(cfg, it):
    out = []
    for mt in range(4):
        s = f"buffer_load_dwordx4 {vr(oO+16*(it%4)+4*mt)}, v{oVO+mt}, {srd(SRD_WS)}, s54 offen{cfg.pol_old}"
        if mt == 0: s = f"s_mov_b32 s54, {it*8192}\n" + s
        out.append(s)
    return out

def oproj_main(a, cfg):
    for it in range(4): emit(a, o_issue_w(cfg, it) + o_issue_o(cfg, it))
    for it in range(16):
        a(f"s_waitcnt vmcnt({8*(min(it+3,15)-it)})")
        A = oA + 16 * (it % 2)
        for nt in range(4):
            for h in range(2):
                a(f"ds_read_b64_tr_b16 {vr(A+4*nt+2*h,2)}, v{oRA+nt} offset:{4096*(it%4)+2048*h}")
        a("s_waitcnt lgkmcnt(0)")
        nxt = it + 4 < 16
        w = o_issue_w(cfg, it + 4) if nxt else []
        o = o_issue_o(cfg, it + 4) if nxt else []
        for mt in range(4):
            for nt in range(4):
                acc = oACC + (mt * 4 + nt) * 4
                a(f"{MFMA} {vr(acc)}, {vr(A+4*nt)}, {vr(oO+16*(it%4)+4*mt)}, {'0' if it == 0 else vr(acc)}")
                if nxt and mt == 0: a(w[nt])
            if nxt and mt >= 1: a(o[mt - 1])
        if nxt: a(o[3])

def oproj_reduce(a, cfg):
    a(f"""
    v_lshlrev_b32 v{vT0}, 4, v{vLANE}
    v_add_u32 v{vT0}, s{sM0B}, v{vT0}
    s_nop 4
    """)
    for t in range(16):
        a(f"ds_write_b128 v{vT0}, {vr(oACC+4*t)} offset:{1024*t}")
    a(f"""
    v_lshrrev_b32 v{vT1}, 1, v{vG}
    v_lshlrev_b32 v{vT1}, 10, v{vT1}
    v_and_b32 v{vT2}, 1, v{vG}
    v_lshl_add_u32 v{vT1}, v{vT2}, 9, v{vT1}
    v_lshl_add_u32 v{vT1}, v{vC}, 4, v{vT1}
    s_lshl_b32 s46, s{sW}, 11
    v_add_u32 v{vT1}, s46, v{vT1}
    v_add_u32 v{vT2}, 0x10000, v{vT1}
    """)
    a(f"""
    s_lshl_b32 s46, s51, 6
    s_lshr_b32 s47, s{sW}, 1
    s_lshl_b32 s47, s47, 4
    s_add_u32 s46, s46, s47
    s_mul_i32 s46, s46, 2560
    s_mul_i32 s47, s{sBR}, 1280
    s_add_u32 s46, s46, s47
    s_lshl_b32 s47, s52, 7
    s_add_u32 s46, s46, s47
    s_and_b32 s47, s{sW}, 1
    s_lshl_b32 s47, s47, 6
    s_add_u32 s46, s46, s47
    v_mul_u32_u24 v{vT3}, 2560, v{vC}
    v_lshl_add_u32 v{vT3}, v{vG}, 4, v{vT3}
    """)
    make_srd(a, SRD_OUT, None, None, 8*96*1280*2)
    a("s_waitcnt lgkmcnt(0)")
    a("s_barrier")
    for src in range(8):
        for e in range(2):
            ad = vT1 if src < 4 else vT2
            a(f"ds_read_b128 {vr(64+8*src+4*e)}, v{ad} offset:{16384*(src&3)+256*e}")
        if src == 6: a("s_waitcnt lgkmcnt(10)")
    pend = 16
    for src in range(1, 8):
        a(f"s_waitcnt lgkmcnt({2*(7-src)})")
        for k in range(8): a(f"v_add_f32 v{64+k}, v{64+k}, v{64+8*src+k}")
    for k in range(4): a(f"v_cvt_pk_bf16_f32 v{64+k}, v{64+2*k}, v{64+2*k+1}")
    a(f"buffer_store_dwordx4 {vr(64)}, v{vT3}, {srd(SRD_OUT)}, s46 offen")

def gen_k2(cfg):
    a = Asm()
    a(f"""
    s_cmp_ge_u32 s2, 240
    s_cbranch_scc1 L_end2
    """)
    stamp(a, cfg, 13)
    a(f"""
    s_and_b32 s{sT0}, s2, 7
    s_lshr_b32 s{sJ}, s2, 3
    s_lshr_b32 s{sBR}, s{sT0}, 2
    s_mul_i32 s{sT1}, s{sBR}, 40
    s_add_u32 s{sT1}, s0, s{sT1}
    s_addc_u32 s{sT2}, s1, 0
    s_load_dwordx2 s[{SRD_WO}:{SRD_WO+1}], s[{sT1}:{sT2}], 32
    s_load_dwordx2 s[{SRD_OUT}:{SRD_OUT+1}], s[0:1], 80
    s_load_dwordx2 s[{SRD_WS}:{SRD_WS+1}], s[0:1], 96
    s_load_dwordx2 s[{SRD_DBG}:{SRD_DBG+1}], s[0:1], {96 if cfg.stamps else 88}
    v_lshrrev_b32 v1, 6, v0
    v_and_b32 v{vLANE}, 63, v0
    s_nop 0
    v_readfirstlane_b32 s{sW}, v1
    v_lshrrev_b32 v{vG}, 4, v{vLANE}
    v_and_b32 v{vC}, 15, v{vLANE}
    s_waitcnt lgkmcnt(0)
    """)
    make_srd(a, SRD_WS, None, None, 2*48*128*1024)
    make_srd(a, SRD_DBG, None, None, 0x10000000 if cfg.stamps else 256)
    oproj_setup(a, cfg)
    oproj_main(a, cfg)
    stamp(a, cfg, 14)
    oproj_reduce(a, cfg)
    if cfg.stamps:
        a("s_waitcnt vmcnt(0)")
        stamp(a, cfg, 15)
        a(f"s_cmp_lg_u32 s{sW}, 0\ns_cbranch_scc1 L_end2")
        write_stamps(a, cfg, 13, 3)
    a("L_end2:\ns_endpgm")
    return a.text()

def build(cfg, path):
    K2 = "oproj_kernel"
    s = build_file([(KN, 256, 512, LDS_BYTES), (K2, 240, 512, 131072)],
                   [(KN, gen_k1(cfg), 256, 102, 256), (K2, gen_k2(cfg), 256, 102, 256)])
    open(path, "w").write(s)

if __name__ == "__main__":
    ap = argparse.ArgumentParser()
    ap.add_argument("out")
    ap.add_argument("--set", action="append", default=[])
    args = ap.parse_args()
    cfg = Cfg()
    for kv in args.set:
        k, v = kv.split("=", 1)
        old = getattr(cfg, k)
        if isinstance(old, bool): v = v in ("1", "true", "True")
        elif isinstance(old, int): v = int(v)
        else: v = (" " + v.replace("+", " ")) if v else ""
        setattr(cfg, k, v)
    build(cfg, args.out)
```
